```python
import torch

def _softmax(x, axis=-1):
    return torch.softmax(x, dim=axis)
def _gelu(x):
    return torch.nn.functional.gelu(x, approximate="tanh")
def _silu(x):
    return torch.nn.functional.silu(x)
def _sigmoid(x):
    return torch.sigmoid(x)
def _layernorm(x, axis=-1, eps=1e-5):
    m = x.mean(dim=axis, keepdim=True)
    v = x.var(dim=axis, keepdim=True, unbiased=False)
    return (x - m) / torch.sqrt(v + eps)
def _scatter_add(tgt, idx, src, axis=0):
    return tgt.clone().index_add_(axis, idx, src)
def _segment_sum(src, seg, n):
    out = torch.zeros((n,) + src.shape[1:], dtype=src.dtype)
    return out.index_add_(0, seg, src)
def _pad(x, pw):
    flat = tuple(v for pair in reversed(pw) for v in pair)
    return torch.nn.functional.pad(x, flat)

kernel_name = 'gated_mix__mha_block__grouped_kv_mqa__prompt'

def setup_inputs():

    _w = (lambda a: (lambda t: t.to(torch.bfloat16) if t.is_floating_point() else t)(torch.as_tensor(a)))
    def _A_setup():
        B, S, D, H = 1, 2048, 640, 32
        return {
            "x": _w((lambda *s: torch.randn(*s, dtype=torch.bfloat16) * 0.1)(B, S, D)),
            "wqkv": _w((lambda *s: torch.randn(*s, dtype=torch.bfloat16) * 0.4)(D, 3 * D)),
            "wo": _w((lambda *s: torch.randn(*s, dtype=torch.bfloat16) * 0.2)(D, D)),
        }
    _A_in = _A_setup()

    def _B_setup():
        B, S, D, H = 1, 2048, 640, 32
        Dh = D // H
        return {
            "x": _w((lambda *s: torch.randn(*s, dtype=torch.bfloat16) * 0.1)(B, S, D)),
            "wq": _w((lambda *s: torch.randn(*s, dtype=torch.bfloat16) * 0.4)(D, H * Dh)),
            "wk": _w((lambda *s: torch.randn(*s, dtype=torch.bfloat16) * 0.4)(D, Dh)),
            "wv": _w((lambda *s: torch.randn(*s, dtype=torch.bfloat16) * 0.4)(D, Dh)),
            "wo": _w((lambda *s: torch.randn(*s, dtype=torch.bfloat16) * 0.4)(H * Dh, D)),
        }
    _B_in = _B_setup()

    return {
        "A_x": _A_in["x"],
        "A_wqkv": _A_in["wqkv"],
        "A_wo": _A_in["wo"],
        "B_x": _B_in["x"],
        "B_wq": _B_in["wq"],
        "B_wk": _B_in["wk"],
        "B_wv": _B_in["wv"],
        "B_wo": _B_in["wo"],
        "gate_w": _w((lambda *s: torch.randn(*s, dtype=torch.bfloat16) * 0.1)(640) * 16.0),
    }

def reference(A_x, A_wqkv, A_wo, B_x, B_wq, B_wk, B_wv, B_wo, gate_w):
    def _A_ref(x, wqkv, wo):
        B, S, D = x.shape
        H = 32
        Dh = D // H
        qkv = (lambda x, *d: x.permute(*d))((x @ wqkv).reshape(B, S, 3, H, Dh), 2, 0, 3, 1, 4)
        q, k, v = qkv[0], qkv[1], qkv[2]
        scores = torch.einsum("bhqd,bhkd->bhqk", q, k) * (Dh ** -0.5)
        p = _softmax(scores, axis=-1)
        o = torch.einsum("bhqk,bhkd->bhqd", p, v)
        return (lambda x, *d: x.permute(*d))(o, 0, 2, 1, 3).reshape(B, S, D) @ wo

    def _B_ref(x, wq, wk, wv, wo):
        B, S, D = x.shape
        H = 32
        Dh = D // H
        q = (lambda x, *d: x.permute(*d))((x @ wq).reshape(B, S, H, Dh), 0, 2, 1, 3)
        k = x @ wk
        v = x @ wv
        scores = torch.einsum("bhqd,bkd->bhqk", q, k) * (Dh ** -0.5)
        p = _softmax(scores, axis=-1)
        o = torch.einsum("bhqk,bkd->bhqd", p, v)
        return (lambda x, *d: x.permute(*d))(o, 0, 2, 1, 3).reshape(B, S, H * Dh) @ wo

    x = A_x
    g = _sigmoid((x * gate_w).sum(-1, keepdims=True))
    a = _A_ref(x, A_wqkv, A_wo)
    b = _B_ref(x, B_wq, B_wk, B_wv, B_wo)
    return g * a + (1 - g) * b
```

```python
S_TOK = 2048
D_MODEL = 640
NH = 32
DH = 20

KV_IMG = 163840
WS_KV = 0
WS_Q = 0x600000
WS_O = 0xC00000
WS_G = 0x1200000
WS_END = 0x1300000

PAIR = 5120
def k0_off(T): return (T >> 1) * PAIR + (T & 1) * 1024
def k1_off(P): return P * PAIR + 2048
def v_off(T): return (T >> 1) * PAIR + 2560 + (T & 1) * 1280

class Asm:
    def __init__(self):
        self.lines = []
    def __call__(self, s, *a):
        for l in s.split("\n"):
            l = l.strip()
            if l:
                self.lines.append("    " + l)
    def label(self, n):
        self.lines.append(n + ":")
    def raw(self, s):
        self.lines.append(s)
    def c(self, s):
        self.lines.append("    ; " + s)
    def text(self):
        return "\n".join(self.lines) + "\n"

def vr(a, n=1):
    return f"v{a}" if n == 1 else f"v[{a}:{a+n-1}]"
def ar(a, n=1):
    return f"a{a}" if n == 1 else f"a[{a}:{a+n-1}]"
def sr(a, n=1):
    return f"s{a}" if n == 1 else f"s[{a}:{a+n-1}]"

def kernel_head(A, name):
    A.raw(f".globl {name}")
    A.raw(".p2align 8")
    A.raw(f".type {name},@function")
    A.label(name)

def kernel_desc(name, vgpr, sgpr, accum):
    return f""".p2align 6
.amdhsa_kernel {name}
  .amdhsa_next_free_vgpr {vgpr}
  .amdhsa_next_free_sgpr {sgpr}
  .amdhsa_accum_offset {accum}
  .amdhsa_group_segment_fixed_size 0
  .amdhsa_kernarg_size 96
  .amdhsa_user_sgpr_count 2
  .amdhsa_user_sgpr_kernarg_segment_ptr 1
  .amdhsa_system_sgpr_workgroup_id_x 1
.end_amdhsa_kernel
"""
```

```python
from common import *
import os
NAME = "oproj_kernel"

ASZ = 8192
WSZ = 10240
SLOT = ASZ + WSZ
WREG = 2 * SLOT
LDS_BYTES = 4 * WREG
RP = 336

def gen_oproj(A):
    sWa, sWb, sOut, sWS = 4, 6, 8, 10
    SA, SW, SO = 12, 16, 20
    sW, sMT, sNT, sT, sU, sAO, sWO, sM = 24, 25, 26, 27, 28, 29, 30, 31
    srd = lambda b: f"s[{b}:{b+3}]"
    ACC = 0
    AF = 80
    WF = 112
    VOA, VOW = 152, 160
    AA, AW = 170, 172
    LN, T0, T1, T2, T3 = 173, 174, 175, 176, 177
    NV = 180

    kernel_head(A, NAME)
    A("s_cmp_ge_u32 s2, 256")
    A("s_cbranch_scc1 L_op_done")
    A(f"s_load_dwordx2 s[{sWa}:{sWa+1}], s[0:1], 16")
    A(f"s_load_dwordx2 s[{sWb}:{sWb+1}], s[0:1], 56")
    A(f"s_load_dwordx2 s[{sOut}:{sOut+1}], s[0:1], 72")
    A(f"s_load_dwordx2 s[{sWS}:{sWS+1}], s[0:1], 88")
    A(f"v_lshrrev_b32 v{T0}, 6, v0")
    A(f"v_and_b32 v{LN}, 63, v0")
    A(f"v_readfirstlane_b32 s{sW}, v{T0}")
    A(f"s_bfe_u32 s{sT}, s2, 0x20001")
    A(f"s_lshl_b32 s{sMT}, s{sT}, 3")
    A(f"s_bfe_u32 s{sT}, s2, 0x30003")
    A(f"s_add_u32 s{sMT}, s{sMT}, s{sT}")
    A(f"s_and_b32 s{sT}, s2, 1")
    A(f"s_lshl_b32 s{sNT}, s{sT}, 2")
    A(f"s_lshr_b32 s{sT}, s2, 6")
    A(f"s_add_u32 s{sNT}, s{sNT}, s{sT}")
    for b in (SA, SW, SO):
        A(f"s_mov_b32 s{b+3}, 0x00020000")
    A(f"s_mov_b32 s{SA+2}, {WS_END}")
    A(f"s_mov_b32 s{SW+2}, {640*1280}")
    A(f"s_mov_b32 s{SO+2}, {2048*1280}")
    A(f"v_lshrrev_b32 v{T0}, 3, v{LN}")
    A(f"v_lshrrev_b32 v{T1}, 4, v{LN}")
    A(f"v_and_b32 v{T2}, 7, v{LN}")
    A(f"v_xor_b32 v{T2}, v{T2}, v{T1}")
    A(f"v_lshlrev_b32 v{T2}, 4, v{T2}")
    A(f"s_lshl_b32 s{sT}, s{sMT}, 6")
    A(f"v_add_u32 v{T0}, s{sT}, v{T0}")
    A(f"v_mul_u32_u24 v{T0}, 2560, v{T0}")
    A(f"v_add_u32 v{VOA}, v{T0}, v{T2}")
    A(f"v_xor_b32 v{T2}, 64, v{T2}")
    A(f"v_add_u32 v{VOA+1}, v{T0}, v{T2}")
    A(f"v_add_u32 v{VOA+1}, {8*2560}, v{VOA+1}")
    for i in range(2, 8):
        A(f"v_add_u32 v{VOA+i}, {16*2560}, v{VOA+i-2}")
    for j in range(10):
        A(f"v_add_u32 v{T0}, {64*j}, v{LN}")
        A(f"v_mul_u32_u24 v{T1}, 6554, v{T0}")
        A(f"v_lshrrev_b32 v{T1}, 16, v{T1}")
        A(f"v_mul_u32_u24 v{T2}, 10, v{T1}")
        A(f"v_sub_u32 v{T2}, v{T0}, v{T2}")
        A(f"v_and_b32 v{T0}, 0x33, v{T1}")
        A(f"v_bfe_u32 v{T3}, v{T1}, 3, 1")
        A(f"v_lshl_add_u32 v{T0}, v{T3}, 2, v{T0}")
        A(f"v_bfe_u32 v{T3}, v{T1}, 2, 1")
        A(f"v_lshl_add_u32 v{T0}, v{T3}, 3, v{T0}")
        A(f"v_mul_u32_u24 v{T0}, 1280, v{T0}")
        A(f"v_lshl_add_u32 v{VOW+j}, v{T2}, 4, v{T0}")
    A(f"s_waitcnt lgkmcnt(0)")
    A(f"s_mov_b32 s{SA}, s{sWS}")
    A(f"s_and_b32 s{SA+1}, s{sWS+1}, 0xffff")
    A(f"s_mov_b32 s{SO}, s{sOut}")
    A(f"s_and_b32 s{SO+1}, s{sOut+1}, 0xffff")
    A(f"s_cmp_lt_u32 s{sW}, 2")
    A(f"s_cselect_b32 s{SW}, s{sWa}, s{sWb}")
    A(f"s_cselect_b32 s{sT}, s{sWa+1}, s{sWb+1}")
    A(f"s_and_b32 s{SW+1}, s{sT}, 0xffff")
    A(f"s_mul_i32 s{sAO}, s{sW}, 640")
    A(f"s_add_u32 s{sAO}, s{sAO}, {WS_O}")
    A(f"s_and_b32 s{sT}, s{sW}, 1")
    A(f"s_mul_i32 s{sWO}, s{sT}, {320*1280}")
    A(f"s_mul_i32 s{sT}, s{sNT}, 160")
    A(f"s_add_u32 s{sWO}, s{sWO}, s{sT}")
    A(f"s_mul_i32 s{sM}, s{sW}, {WREG}")

    def dma_chunk(c):
        slot = c & 1
        for i in range(8):
            A(f"s_add_u32 m0, s{sM}, {slot*SLOT + 1024*i}")
            A("s_nop 0")
            A(f"buffer_load_dwordx4 v{VOA+i}, {srd(SA)}, s{sAO} offen lds")
        for j in range(10):
            A(f"s_add_u32 m0, s{sM}, {slot*SLOT + ASZ + 1024*j}")
            A("s_nop 0")
            A(f"buffer_load_dwordx4 v{VOW+j}, {srd(SW)}, s{sWO} offen lds")
        A(f"s_add_u32 s{sAO}, s{sAO}, 128")
        A(f"s_add_u32 s{sWO}, s{sWO}, {64*1280}")
    dma_chunk(0)
    dma_chunk(1)
    A(f"v_and_b32 v{T0}, 15, v{LN}")
    A(f"v_lshrrev_b32 v{T1}, 4, v{LN}")
    A(f"v_lshrrev_b32 v{T2}, 1, v{T0}")
    A(f"v_xor_b32 v{T2}, v{T2}, v{T1}")
    A(f"v_lshlrev_b32 v{T2}, 4, v{T2}")
    A(f"v_lshl_add_u32 v{T2}, v{T0}, 7, v{T2}")
    A(f"v_add_u32 v{AA}, s{sM}, v{T2}")
    A(f"v_xor_b32 v{AA+1}, 64, v{AA}")
    A(f"v_lshrrev_b32 v{T2}, 1, v{T1}")
    A(f"v_lshlrev_b32 v{T2}, 4, v{T2}")
    A(f"v_and_b32 v{T3}, 1, v{T1}")
    A(f"v_lshl_add_u32 v{T2}, v{T3}, 2, v{T2}")
    A(f"v_bfe_u32 v{T3}, v{LN}, 2, 2")
    A(f"v_add_u32 v{T2}, v{T2}, v{T3}")
    A(f"v_mul_u32_u24 v{T2}, 160, v{T2}")
    A(f"v_and_b32 v{T3}, 3, v{LN}")
    A(f"v_lshl_add_u32 v{T2}, v{T3}, 3, v{T2}")
    A(f"v_add_u32 v{AW}, s{sM}, v{T2}")
    for i in range(80):
        A(f"v_mov_b32 v{ACC+i}, 0")

    def reads(c, u):
        slot = c & 1
        b = u
        for rt in range(4):
            A(f"ds_read_b128 {vr(AF+16*b+4*rt,4)}, v{AA+u} offset:{slot*SLOT + rt*2048}")
        for ct in range(5):
            for h in range(2):
                A(f"ds_read_b64_tr_b16 {vr(WF+20*b+4*ct+2*h,2)}, v{AW} offset:{slot*SLOT + ASZ + u*5120 + h*1280 + ct*32}")
    def mfmas(u):
        b = u
        for ct in range(5):
            for rt in range(4):
                a = ACC + (rt * 5 + ct) * 4
                A(f"v_mfma_f32_16x16x32_bf16 {vr(a,4)}, {vr(WF+20*b+4*ct,4)}, {vr(AF+16*b+4*rt,4)}, {vr(a,4)}")
    for c in range(5):
        A(f"s_waitcnt vmcnt({18 if c < 4 else 0})")
        reads(c, 0)
        reads(c, 1)
        A("s_waitcnt lgkmcnt(14)")
        mfmas(0)
        A("s_waitcnt lgkmcnt(0)")
        if c + 2 < 5:
            dma_chunk(c + 2)
        mfmas(1)
    A(f"v_and_b32 v{T0}, 15, v{LN}")
    A(f"v_lshrrev_b32 v{T1}, 4, v{LN}")
    A(f"v_mul_u32_u24 v{T0}, {RP}, v{T0}")
    A(f"v_lshl_add_u32 v{T0}, v{T1}, 4, v{T0}")
    A(f"v_add_u32 v{T0}, s{sM}, v{T0}")
    A("s_nop 7")
    for rt in range(4):
        for ct in range(5):
            a = ACC + (rt * 5 + ct) * 4
            A(f"ds_write_b128 v{T0}, {vr(a,4)} offset:{rt*16*RP + ct*64}")
    A("s_waitcnt lgkmcnt(0)")
    A("s_barrier")
    A(f"s_mul_i32 s{sT}, s{sW}, {16*RP}")
    A(f"s_lshl_b32 s{sU}, s{sMT}, 6")
    A(f"s_lshl_b32 s{sAO}, s{sW}, 4")
    A(f"s_add_u32 s{sU}, s{sU}, s{sAO}")
    A(f"s_mul_i32 s{sU}, s{sU}, 1280")
    A(f"s_mul_i32 s{sAO}, s{sNT}, 160")
    A(f"s_add_u32 s{sU}, s{sU}, s{sAO}")
    for r in range(5):
        A(f"v_add_u32 v{T0}, {64*r}, v{LN}")
        A(f"v_mul_u32_u24 v{T1}, 3277, v{T0}")
        A(f"v_lshrrev_b32 v{T1}, 16, v{T1}")
        A(f"v_mul_u32_u24 v{T2}, 20, v{T1}")
        A(f"v_sub_u32 v{T2}, v{T0}, v{T2}")
        A(f"v_mul_u32_u24 v{T3}, {RP}, v{T1}")
        A(f"v_lshl_add_u32 v{T3}, v{T2}, 4, v{T3}")
        A(f"v_add_u32 v{T3}, s{sT}, v{T3}")
        A(f"v_add_u32 v{T0}, {2*WREG}, v{T3}")
        for p in range(4):
            A(f"ds_read_b128 {vr(16*r+4*p,4)}, v{T3 if p < 2 else T0} offset:{(p&1)*WREG}")
        A(f"v_mul_u32_u24 v{T1}, 1280, v{T1}")
        A(f"v_lshl_add_u32 v{VOA+r}, v{T2}, 3, v{T1}")
    for r in range(5):
        A(f"s_waitcnt lgkmcnt({min(15, 4*(4-r))})")
        b = 16 * r
        for i in range(4):
            A(f"v_add_f32 v{b+i}, v{b+i}, v{b+4+i}")
            A(f"v_add_f32 v{b+8+i}, v{b+8+i}, v{b+12+i}")
        for i in range(4):
            A(f"v_add_f32 v{b+i}, v{b+i}, v{b+8+i}")
        A(f"v_cvt_pk_bf16_f32 v{b}, v{b}, v{b+1}")
        A(f"v_cvt_pk_bf16_f32 v{b+1}, v{b+2}, v{b+3}")
        A(f"buffer_store_dwordx2 {vr(b,2)}, v{VOA+r}, {srd(SO)}, s{sU} offen")
    A.label("L_op_done")
    A("s_endpgm")
    return dict(name=NAME, vgpr=NV, sgpr=40, grid=256, block=256, lds=LDS_BYTES)
```

```python
from common import *
import os
NAME = "proj_kernel"
STAMP = os.environ.get('STAMP')

XS = 16384
WB = 65536
WSZ = 20480
EB = WB + 4 * WSZ
ESZ = 2560
LDS_BYTES = EB + 4 * ESZ + 256
QPAIR = 2560
QHEAD = 32 * QPAIR
QSCALE = 0x3ea5296d

import struct, math
QSCALE = struct.unpack('<I', struct.pack('<f', (20 ** -0.5) * math.log2(math.e)))[0]

def gen_proj(A):
    sX, sWq, sWb, sWk, sWv, sGt, sWS = 4, 6, 8, 10, 12, 14, 16
    SX, SW, SO = 20, 24, 28
    SG = 32
    sW, sMT, sNT, sT, sU, sIT, sPITCH = 36, 37, 38, 39, 40, 41, 42
    sXO, sWO, sMX, sMW = 43, 44, 45, 46
    sRX, sRW = 47, 48
    sNX, sNW = 49, 50
    sST = 51
    sB0, sB1, sHS, sSC, sTT = 52, 53, 54, 55, 56
    srd = lambda b: f"s[{b}:{b+3}]"
    ACC = 0
    XF = [80, 84]
    WF = 88
    AX0, AX, AW0, AW = 108, 112, 116, 117
    VOX, VOW = 118, 122
    LN, T0, T1, T2, T3 = 127, 128, 129, 130, 131
    VS = 132
    NV = 140

    def csel(d, a, b):
        A(f"s_mov_b32 s{d}, {a}")
        A(f"s_cselect_b32 s{d}, s{d}, {b}")
    kernel_head(A, NAME)
    A("s_cmp_ge_u32 s2, 256")
    A("s_cbranch_scc1 L_proj_done")
    A(f"s_load_dwordx4 s[{sX}:{sX+3}], s[0:1], 0")
    A(f"s_load_dwordx2 s[{sWb}:{sWb+1}], s[0:1], 32")
    A(f"s_load_dwordx4 s[{sWv}:{sWv+3}], s[0:1], 48")
    A(f"s_load_dwordx2 s[{sWk}:{sWk+1}], s[0:1], 40")
    A(f"s_load_dwordx2 s[{sWS}:{sWS+1}], s[0:1], 88")
    A(f"s_load_dwordx2 s[18:19], s[0:1], 64")
    A(f"v_lshrrev_b32 v{T0}, 6, v0")
    A(f"v_and_b32 v{LN}, 63, v0")
    A(f"v_readfirstlane_b32 s{sW}, v{T0}")
    A(f"s_and_b32 s{sT}, s2, 1")
    A(f"s_lshl_b32 s{sMT}, s{sT}, 3")
    A(f"s_lshr_b32 s{sT}, s2, 3")
    A(f"s_and_b32 s{sT}, s{sT}, 7")
    A(f"s_add_u32 s{sMT}, s{sMT}, s{sT}")
    A(f"s_lshr_b32 s{sT}, s2, 1")
    A(f"s_and_b32 s{sT}, s{sT}, 3")
    A(f"s_lshl_b32 s{sNT}, s{sT}, 2")
    A(f"s_lshr_b32 s{sT}, s2, 6")
    A(f"s_add_u32 s{sNT}, s{sNT}, s{sT}")
    for b in (SX, SW, SO, SG):
        A(f"s_mov_b32 s{b+3}, 0x00020000")
    A(f"s_mov_b32 s{sNX}, {2048*1280}")
    A(f"s_mov_b32 s{SX+2}, {2048*1280}")
    A(f"s_mov_b32 s{SO+2}, {WS_END}")
    A(f"s_mov_b32 s{SG+2}, 1280")
    A(f"s_waitcnt lgkmcnt(0)")
    A(f"s_mov_b32 s{SX}, s{sX}")
    A(f"s_and_b32 s{SX+1}, s{sX+1}, 0xffff")
    A(f"s_mov_b32 s{SO}, s{sWS}")
    A(f"s_and_b32 s{SO+1}, s{sWS+1}, 0xffff")
    A(f"s_mov_b32 s{SG}, s18")
    A(f"s_and_b32 s{SG+1}, s19, 0xffff")
    A(f"s_cmp_eq_u32 s{sW}, 4")
    A(f"s_cbranch_scc1 L_proj_extra")

    A(f"s_cmp_lt_u32 s{sNT}, 12")
    A(f"s_cselect_b32 s{SW}, s{sWq}, s{sWb}")
    A(f"s_cselect_b32 s{sU}, s{sWq+1}, s{sWb+1}")
    csel(sPITCH, 3840, 1280)
    csel(sNW, 640*3840, 640*1280)
    A(f"s_cselect_b32 s{sT}, 0, 12")
    A(f"s_and_b32 s{SW+1}, s{sU}, 0xffff")
    A(f"s_mov_b32 s{SW+2}, s{sNW}")
    A(f"s_sub_u32 s{sT}, s{sNT}, s{sT}")
    A(f"s_mul_i32 s{sWO}, s{sT}, 320")
    A(f"v_lshrrev_b32 v{T0}, 3, v{LN}")
    A(f"v_lshrrev_b32 v{T1}, 4, v{LN}")
    A(f"v_and_b32 v{T2}, 7, v{LN}")
    A(f"v_xor_b32 v{T2}, v{T2}, v{T1}")
    A(f"v_lshlrev_b32 v{T2}, 4, v{T2}")
    A(f"s_lshl_b32 s{sT}, s{sMT}, 7")
    A(f"s_lshl_b32 s{sU}, s{sW}, 5")
    A(f"s_add_u32 s{sT}, s{sT}, s{sU}")
    A(f"v_add_u32 v{T0}, s{sT}, v{T0}")
    A(f"v_mul_u32_u24 v{T0}, 1280, v{T0}")
    A(f"v_add_u32 v{VOX}, v{T0}, v{T2}")
    A(f"v_xor_b32 v{T2}, 64, v{T2}")
    A(f"v_add_u32 v{VOX+1}, v{T0}, v{T2}")
    A(f"v_add_u32 v{VOX+1}, {8*1280}, v{VOX+1}")
    A(f"v_add_u32 v{VOX+2}, {16*1280}, v{VOX}")
    A(f"v_add_u32 v{VOX+3}, {16*1280}, v{VOX+1}")
    A(f"s_mul_i32 s{sT}, s{sW}, 320")
    for jj in range(5):
        A(f"v_add_u32 v{T0}, s{sT}, v{LN}")
        if jj: A(f"v_add_u32 v{T0}, {64*jj}, v{T0}")
        A(f"v_mul_u32_u24 v{T1}, 3277, v{T0}")
        A(f"v_lshrrev_b32 v{T1}, 16, v{T1}")
        A(f"v_mul_u32_u24 v{T2}, 20, v{T1}")
        A(f"v_sub_u32 v{T2}, v{T0}, v{T2}")
        A(f"v_mul_u32_u24 v{T1}, s{sPITCH}, v{T1}")
        A(f"v_lshl_add_u32 v{VOW+jj}, v{T2}, 4, v{T1}")
    A(f"s_mov_b32 s{sXO}, 0")
    A(f"s_lshl_b32 s{sMX}, s{sW}, 12")
    A(f"s_mul_i32 s{sMW}, s{sW}, 5120")
    A(f"s_add_u32 s{sMW}, s{sMW}, {WB}")
    A(f"s_mov_b32 s{sST}, 0")
    A(f"s_lshl_b32 s{sPITCH}, s{sPITCH}, 6")

    def dma(n):
        if n < 4:
            A(f"s_add_u32 m0, s{sMX}, {1024*n}")
            A("s_nop 0")
            A(f"buffer_load_dwordx4 v{VOX+n}, {srd(SX)}, s{sXO} offen lds")
        else:
            A(f"s_add_u32 m0, s{sMW}, {1024*(n-4)}")
            A("s_nop 0")
            A(f"buffer_load_dwordx4 v{VOW+n-4}, {srd(SW)}, s{sWO} offen lds")
    def next_stage():
        A(f"s_add_u32 s{sST}, s{sST}, 1")
        A(f"s_add_u32 s{sXO}, s{sXO}, 128")
        A(f"s_add_u32 s{sWO}, s{sWO}, s{sPITCH}")
        A(f"s_add_u32 s{sMX}, s{sMX}, {XS}")
        A(f"s_and_b32 s{sMX}, s{sMX}, 0xffff")
        A(f"s_add_u32 s{sMW}, s{sMW}, {WSZ}")
        A(f"s_sub_u32 s{sT}, s{sMW}, {4*WSZ}")
        A(f"s_cmp_ge_u32 s{sMW}, {WB+4*WSZ}")
        A(f"s_cselect_b32 s{sMW}, s{sT}, s{sMW}")
        A(f"s_cmp_lt_u32 s{sST}, 10")
        A(f"s_cselect_b32 s{SX+2}, s{sNX}, 0")
        A(f"s_cselect_b32 s{SW+2}, s{sNW}, 0")
    for st in range(2):
        for n in range(9): dma(n)
        next_stage()
    for n in range(3): dma(n)

    A(f"v_and_b32 v{T0}, 31, v{LN}")
    A(f"v_lshrrev_b32 v{T1}, 5, v{LN}")
    A(f"v_lshrrev_b32 v{T2}, 1, v{T0}")
    A(f"v_and_b32 v{T2}, 7, v{T2}")
    A(f"v_xor_b32 v{T2}, v{T2}, v{T1}")
    A(f"v_lshlrev_b32 v{T2}, 4, v{T2}")
    A(f"s_lshl_b32 s{sT}, s{sW}, 12")
    A(f"v_lshl_add_u32 v{T2}, v{T0}, 7, v{T2}")
    A(f"v_add_u32 v{AX0}, s{sT}, v{T2}")
    for k in range(1, 4):
        A(f"v_xor_b32 v{AX0+k}, {32*k}, v{AX0}")
    A(f"v_bfe_u32 v{T2}, v{LN}, 2, 2")
    A(f"v_lshl_add_u32 v{T2}, v{T1}, 3, v{T2}")
    A(f"v_mul_u32_u24 v{T2}, 320, v{T2}")
    A(f"v_bfe_u32 v{T3}, v{LN}, 4, 1")
    A(f"v_lshl_add_u32 v{T2}, v{T3}, 5, v{T2}")
    A(f"v_and_b32 v{T3}, 3, v{LN}")
    A(f"v_lshl_add_u32 v{T2}, v{T3}, 3, v{T2}")
    A(f"v_add_u32 v{AW0}, {WB}, v{T2}")
    for k in range(4):
        A(f"v_mov_b32 v{AX+k}, v{AX0+k}")
    A(f"v_mov_b32 v{AW}, v{AW0}")
    A(f"s_mov_b32 s{sRX}, 0")
    A(f"s_mov_b32 s{sRW}, 0")
    for i in range(80):
        A(f"v_mov_b32 v{ACC+i}, 0")
    A(f"s_mov_b32 s{sIT}, 0")

    def rd_x(ks):
        A(f"ds_read_b128 {vr(XF[ks&1],4)}, v{AX+ks}")
    def rd_w(j, ks):
        for h2 in range(2):
            A(f"ds_read_b64_tr_b16 {vr(WF+4*j+2*h2,2)}, v{AW} offset:{ks*5120+h2*1280+j*64}")

    A("s_waitcnt vmcnt(12)")
    A("s_barrier")
    rd_x(0)
    for j in range(5): rd_w(j, 0)
    A(f"s_cmp_ge_u32 s{sNT}, 8")
    A(f"s_cbranch_scc0 L_proj_loop_qk")
    A(f"s_cmp_lt_u32 s{sNT}, 12")
    A(f"s_cbranch_scc1 L_proj_loop_v")

    def main_loop(kind):
        A.label(f"L_proj_loop_{kind}")
        for ks in range(4):
            nks = (ks + 1) & 3
            if ks == 3:
                A("s_waitcnt vmcnt(9)")
                A("s_barrier")
                next_stage()
                A(f"s_add_u32 s{sRX}, s{sRX}, {XS}")
                A(f"s_and_b32 s{sRX}, s{sRX}, 0xffff")
                A(f"s_add_u32 s{sRW}, s{sRW}, {WSZ}")
                A(f"s_cmp_ge_u32 s{sRW}, {4*WSZ}")
                A(f"s_cselect_b32 s{sRW}, 0, s{sRW}")
                for k in range(4):
                    A(f"v_add_u32 v{AX+k}, s{sRX}, v{AX0+k}")
                A(f"v_add_u32 v{AW}, s{sRW}, v{AW0}")
            rd_x(nks)
            for j in range(5):
                A("s_waitcnt lgkmcnt(9)")
                a, b = vr(WF+4*j, 4), vr(XF[ks&1], 4)
                if kind == 'v': a, b = b, a
                A(f"v_mfma_f32_32x32x16_bf16 {vr(ACC+16*j,16)}, {a}, {b}, {vr(ACC+16*j,16)}")
                rd_w(j, nks)
                base = {3: 0, 0: 3, 1: 6}.get(ks)
                if base is not None and j in (0, 2, 4):
                    dma(base + j // 2)
        A(f"s_add_u32 s{sIT}, s{sIT}, 1")
        A(f"s_cmp_lt_u32 s{sIT}, 10")
        A(f"s_cbranch_scc1 L_proj_loop_{kind}")

    main_loop('qk')
    A(f"s_and_b32 s{sTT}, s{sW}, 1")
    A(f"s_lshl_b32 s{sT}, s{sMT}, 1")
    A(f"s_lshr_b32 s{sU}, s{sW}, 1")
    A(f"s_add_u32 s{sT}, s{sT}, s{sU}")
    A(f"s_lshr_b32 s{sU}, s{sNT}, 2")
    A(f"s_cmp_eq_u32 s{sU}, 1")
    csel(sHS, KV_IMG, QHEAD)
    csel(sB1, PAIR, QPAIR)
    csel(sU, WS_KV, WS_Q)
    A(f"s_cselect_b32 s{sSC}, 1.0, {QSCALE:#x}")
    A(f"s_mul_i32 s{sB0}, s{sT}, s{sB1}")
    A(f"s_add_u32 s{sB0}, s{sB0}, s{sU}")
    A(f"s_and_b32 s{sT}, s{sNT}, 3")
    A(f"s_lshl_b32 s{sT}, s{sT}, 3")
    A(f"s_cmp_ge_u32 s{sNT}, 12")
    A(f"s_cselect_b32 s{sU}, 32, 0")
    A(f"s_add_u32 s{sT}, s{sT}, s{sU}")
    A(f"s_mul_i32 s{sT}, s{sT}, s{sHS}")
    A(f"s_add_u32 s{sB0}, s{sB0}, s{sT}")
    A(f"s_lshl_b32 s{sT}, s{sTT}, 3")
    A(f"s_add_u32 s{sB1}, s{sB0}, s{sT}")
    A(f"s_add_u32 s{sB1}, s{sB1}, 2048")
    A(f"s_lshl_b32 s{sT}, s{sTT}, 10")
    A(f"s_add_u32 s{sB0}, s{sB0}, s{sT}")
    A(f"v_and_b32 v{T0}, 31, v{LN}")
    A(f"v_lshlrev_b32 v{T0}, 4, v{T0}")
    A(f"v_lshrrev_b32 v{T1}, 5, v{LN}")
    A(f"v_lshl_add_u32 v{VS}, v{T1}, 3, v{T0}")
    A(f"v_mul_u32_u24 v{T2}, 504, v{T1}")
    A(f"v_add_u32 v{VS+1}, v{T2}, v{T0}")
    A(f"s_sub_u32 s{sT}, s{sB1}, s{sB0}")
    A(f"s_sub_u32 s{sU}, s{sT}, 520")
    A(f"v_mul_u32_u24 v{T2}, s{sU}, v{T1}")
    A(f"v_add_u32 v{VS+2}, v{T2}, v{T0}")
    A(f"s_sub_u32 s{sU}, s{sHS}, s{sT}")
    A(f"v_mul_u32_u24 v{T2}, s{sU}, v{T1}")
    A(f"v_add_u32 v{VS+3}, v{T2}, v{T0}")
    A("s_nop 7")
    for j in range(5):
        for g in range(4):
            r = ACC + 16 * j + 4 * g
            c0 = 8 * j + 2 * g
            hl, dg0 = c0 // 5, c0 % 5
            for i in range(4):
                A(f"v_mul_f32 v{r+i}, s{sSC}, v{r+i}")
            A(f"v_cvt_pk_bf16_f32 v{r}, v{r}, v{r+1}")
            A(f"v_cvt_pk_bf16_f32 v{r+1}, v{r+2}, v{r+3}")
            A(f"s_mul_i32 s{sT}, s{sHS}, {hl}")
            A(f"s_add_u32 s{sT}, s{sT}, s{sB1 if dg0 == 4 else sB0}")
            vs = VS + {0: 0, 2: 0, 1: 1, 3: 2, 4: 3}[dg0]
            imm = {0: 0, 1: 8, 2: 512, 3: 520, 4: 0}[dg0]
            A(f"buffer_store_dwordx2 {vr(r,2)}, v{vs}, {srd(SO)}, s{sT} offen offset:{imm}")
    A("s_endpgm")

    main_loop('v')
    A(f"s_and_b32 s{sTT}, s{sW}, 1")
    A(f"s_lshl_b32 s{sT}, s{sMT}, 1")
    A(f"s_lshr_b32 s{sU}, s{sW}, 1")
    A(f"s_add_u32 s{sT}, s{sT}, s{sU}")
    A(f"s_mul_i32 s{sB0}, s{sT}, {PAIR}")
    A(f"s_mul_i32 s{sT}, s{sTT}, 1280")
    A(f"s_add_u32 s{sB0}, s{sB0}, s{sT}")
    A(f"s_and_b32 s{sT}, s{sNT}, 3")
    A(f"s_mul_i32 s{sT}, s{sT}, {8*KV_IMG}")
    A(f"s_add_u32 s{sB0}, s{sB0}, s{sT}")
    A(f"s_add_u32 s{sB0}, s{sB0}, {WS_KV + 2560}")
    A(f"v_lshrrev_b32 v{T1}, 5, v{LN}")
    A(f"v_mul_u32_u24 v{T3}, 320, v{T1}")
    A(f"s_mov_b32 s{sT}, {KV_IMG}")
    for j in range(5):
        A(f"v_and_b32 v{T0}, 31, v{LN}")
        if j: A(f"v_add_u32 v{T0}, {32*j}, v{T0}")
        A(f"v_mul_u32_u24 v{T1}, 3277, v{T0}")
        A(f"v_lshrrev_b32 v{T1}, 16, v{T1}")
        A(f"v_mul_u32_u24 v{T2}, 20, v{T1}")
        A(f"v_sub_u32 v{T2}, v{T0}, v{T2}")
        A(f"v_mul_u32_u24 v{T1}, s{sT}, v{T1}")
        A(f"v_lshl_add_u32 v{T1}, v{T2}, 4, v{T1}")
        A(f"v_add_u32 v{VS+j}, v{T1}, v{T3}")
    for j in range(5):
        for t in range(2):
            r = ACC + 16 * j + 8 * t
            for i in range(4):
                A(f"v_cvt_pk_bf16_f32 v{r+i}, v{r+2*i}, v{r+2*i+1}")
            A(f"buffer_store_dwordx4 {vr(r,4)}, v{VS+j}, {srd(SO)}, s{sB0} offen offset:{640*t}")
    A("s_endpgm")

    A.label("L_proj_extra")
    EA = 0
    GF = 16
    EX = 96
    EW = 104
    EAX, EAW, EVO = 120, 122, 123
    EAX0, EAW0 = 124, 126
    A(f"s_and_b32 s{sTT}, s{sNT}, 1")
    A(f"s_cmp_eq_u32 s{sTT}, 0")
    A(f"s_cselect_b32 s{SW}, s{sWk}, s{sWv}")
    A(f"s_cselect_b32 s{sT}, s{sWk+1}, s{sWv+1}")
    A(f"s_and_b32 s{SW+1}, s{sT}, 0xffff")
    A(f"s_mov_b32 s{sNW}, {640*40}")
    A(f"s_mov_b32 s{SW+2}, {640*40}")
    A(f"v_lshlrev_b32 v{EVO}, 4, v{LN}")
    A(f"v_lshrrev_b32 v{T0}, 4, v{LN}")
    A(f"v_lshlrev_b32 v{T0}, 4, v{T0}")
    for s in range(20):
        A(f"buffer_load_dwordx4 {vr(GF+4*s,4)}, v{T0}, {srd(SG)}, 0 offen offset:{64*s}")
    A(f"s_mov_b32 s{sWO}, 0")
    A(f"s_mov_b32 s{sMW}, {EB}")
    A(f"s_mov_b32 s{sST}, 0")
    def edma():
        A(f"s_mov_b32 m0, s{sMW}")
        A("s_nop 0")
        A(f"buffer_load_dwordx4 v{EVO}, {srd(SW)}, s{sWO} offen lds")
        A(f"buffer_load_dwordx4 v{EVO}, {srd(SW)}, s{sWO} offen offset:1024 lds")
        A(f"s_mov_b32 exec_hi, 0")
        A(f"buffer_load_dwordx4 v{EVO}, {srd(SW)}, s{sWO} offen offset:2048 lds")
        A(f"s_mov_b64 exec, -1")
        A(f"s_add_u32 s{sST}, s{sST}, 1")
        A(f"s_add_u32 s{sWO}, s{sWO}, {ESZ}")
        A(f"s_add_u32 s{sMW}, s{sMW}, {ESZ}")
        A(f"s_cmp_ge_u32 s{sMW}, {EB+4*ESZ}")
        A(f"s_cselect_b32 s{sMW}, {EB}, s{sMW}")
    for st in range(3): edma()
    A(f"s_lshr_b32 s{sT}, s{sNT}, 1")
    A(f"s_lshl_b32 s{sT}, s{sT}, 4")
    A(f"v_and_b32 v{T0}, 15, v{LN}")
    A(f"v_add_u32 v{T0}, s{sT}, v{T0}")
    A(f"v_bfe_u32 v{T1}, v{T0}, 1, 3")
    A(f"v_lshrrev_b32 v{T2}, 4, v{LN}")
    A(f"v_xor_b32 v{T1}, v{T1}, v{T2}")
    A(f"v_lshlrev_b32 v{T1}, 4, v{T1}")
    A(f"v_lshl_add_u32 v{EAX0}, v{T0}, 7, v{T1}")
    A(f"v_xor_b32 v{EAX0+1}, 64, v{EAX0}")
    A(f"v_bfe_u32 v{T1}, v{LN}, 2, 2")
    A(f"v_lshl_add_u32 v{T1}, v{T2}, 3, v{T1}")
    A(f"v_mul_u32_u24 v{T1}, 40, v{T1}")
    A(f"v_and_b32 v{T3}, 3, v{LN}")
    A(f"v_lshl_add_u32 v{T1}, v{T3}, 3, v{T1}")
    A(f"v_add_u32 v{EAW0}, {EB}, v{T1}")
    for i in range(12):
        A(f"v_mov_b32 v{EA+i}, 0")
    A(f"s_mov_b32 s{sRX}, 0")
    A(f"s_mov_b32 s{sRW}, 0")
    A("s_waitcnt vmcnt(6)")
    A("s_barrier")
    A(f"s_cmp_eq_u32 s{sTT}, 0")
    A(f"s_cbranch_scc0 L_proj_ex_v")
    for kind in ('k', 'v'):
        if kind == 'v': A.label("L_proj_ex_v")
        for st in range(10):
            A(f"v_add_u32 v{EAX}, s{sRX}, v{EAX0}")
            A(f"v_add_u32 v{EAX+1}, s{sRX}, v{EAX0+1}")
            A(f"v_add_u32 v{EAW}, s{sRW}, v{EAW0}")
            for u in range(2):
                A(f"ds_read_b128 {vr(EX+4*u,4)}, v{EAX+u}")
                for ct in range(2):
                    for h2 in range(2):
                        A(f"ds_read_b64_tr_b16 {vr(EW+8*u+4*ct+2*h2,2)}, v{EAW} offset:{u*1280+h2*160+ct*32}")
            A("s_waitcnt lgkmcnt(0)")
            for u in range(2):
                for ct in range(2):
                    a, b = vr(EW+8*u+4*ct, 4), vr(EX+4*u, 4)
                    if kind == 'v': a, b = b, a
                    A(f"v_mfma_f32_16x16x32_bf16 {vr(EA+4*ct,4)}, {a}, {b}, {vr(EA+4*ct,4)}")
                if kind == 'k':
                    A(f"v_mfma_f32_16x16x32_bf16 {vr(EA+8,4)}, {vr(GF+4*(2*st+u),4)}, {vr(EX+4*u,4)}, {vr(EA+8,4)}")
            A(f"s_waitcnt vmcnt({3 if st + 2 <= 9 else 0})")
            A("s_barrier")
            if st + 3 <= 9: edma()
            A(f"s_add_u32 s{sRX}, s{sRX}, {XS}")
            A(f"s_and_b32 s{sRX}, s{sRX}, 0xffff")
            A(f"s_add_u32 s{sRW}, s{sRW}, {ESZ}")
            A(f"s_cmp_ge_u32 s{sRW}, {4*ESZ}")
            A(f"s_cselect_b32 s{sRW}, 0, s{sRW}")
        A(f"s_lshl_b32 s{sT}, s{sMT}, 1")
        A(f"s_lshr_b32 s{sU}, s{sNT}, 3")
        A(f"s_add_u32 s{sT}, s{sT}, s{sU}")
        A(f"s_mul_i32 s{sB0}, s{sT}, {PAIR}")
        A(f"s_add_u32 s{sB0}, s{sB0}, {WS_KV + 32*KV_IMG}")
        A(f"s_bfe_u32 s{sTT}, s{sNT}, 0x10002")
        A(f"s_bfe_u32 s{sU}, s{sNT}, 0x10001")
        A(f"v_and_b32 v{T0}, 15, v{LN}")
        A(f"v_lshrrev_b32 v{T1}, 4, v{LN}")
        A(f"v_cvt_pk_bf16_f32 v{EA}, v{EA}, v{EA+1}")
        A(f"v_cvt_pk_bf16_f32 v{EA+1}, v{EA+2}, v{EA+3}")
        A(f"v_cvt_pk_bf16_f32 v{EA+4}, v{EA+4}, v{EA+5}")
        A(f"v_cvt_pk_bf16_f32 v{EA+5}, v{EA+6}, v{EA+7}")
        if kind == 'k':
            A(f"s_lshl_b32 s{sU}, s{sU}, 8")
            A(f"s_add_u32 s{sB0}, s{sB0}, s{sU}")
            A(f"v_lshlrev_b32 v{T0}, 4, v{T0}")
            A(f"v_lshrrev_b32 v{T2}, 1, v{T1}")
            A(f"v_lshl_add_u32 v{T2}, v{T2}, 9, v{T0}")
            A(f"v_and_b32 v{T3}, 1, v{T1}")
            A(f"v_lshl_add_u32 v{T2}, v{T3}, 3, v{T2}")
            A(f"s_lshl_b32 s{sT}, s{sTT}, 10")
            A(f"s_add_u32 s{sT}, s{sT}, s{sB0}")
            A(f"buffer_store_dwordx2 {vr(EA,2)}, v{T2}, {srd(SO)}, s{sT} offen")
            A(f"s_lshl_b32 s{sT}, s{sTT}, 3")
            A(f"s_add_u32 s{sT}, s{sT}, s{sB0}")
            A(f"v_mul_f32 v{EA+8}, 0xbfb8aa3b, v{EA+8}")
            A(f"v_exp_f32 v{EA+8}, v{EA+8}")
            A("s_nop 0")
            A(f"v_add_f32 v{EA+8}, 1.0, v{EA+8}")
            A(f"v_rcp_f32 v{EA+8}, v{EA+8}")
            A(f"s_mov_b32 exec_lo, 0xffff")
            A(f"s_mov_b32 exec_hi, 0")
            A(f"buffer_store_dwordx2 {vr(EA+4,2)}, v{T0}, {srd(SO)}, s{sT} offen offset:2048")
            A(f"s_lshl_b32 s{sT}, s{sMT}, 9")
            A(f"s_lshr_b32 s{sU}, s{sNT}, 1")
            A(f"s_lshl_b32 s{sU}, s{sU}, 6")
            A(f"s_add_u32 s{sT}, s{sT}, s{sU}")
            A(f"s_add_u32 s{sT}, s{sT}, {WS_G}")
            A(f"v_lshrrev_b32 v{T0}, 2, v{T0}")
            A(f"buffer_store_dword v{EA+8}, v{T0}, {srd(SO)}, s{sT} offen")
            A("s_endpgm")
        else:
            A(f"s_mul_i32 s{sU}, s{sU}, 640")
            A(f"s_add_u32 s{sB0}, s{sB0}, s{sU}")
            A(f"s_mul_i32 s{sT}, s{sTT}, 1280")
            A(f"s_add_u32 s{sB0}, s{sB0}, s{sT}")
            A(f"v_and_b32 v{T2}, 1, v{T1}")
            A(f"v_mul_u32_u24 v{T2}, 320, v{T2}")
            A(f"v_lshl_add_u32 v{T2}, v{T0}, 4, v{T2}")
            A(f"v_lshrrev_b32 v{T3}, 1, v{T1}")
            A(f"v_lshl_add_u32 v{T2}, v{T3}, 3, v{T2}")
            A(f"buffer_store_dwordx2 {vr(EA,2)}, v{T2}, {srd(SO)}, s{sB0} offen offset:2560")
            A(f"v_cmp_gt_u32 vcc, 4, v{T0}")
            A(f"s_and_b64 exec, exec, vcc")
            A(f"buffer_store_dwordx2 {vr(EA+4,2)}, v{T2}, {srd(SO)}, s{sB0} offen offset:{2560+256}")
    A.label("L_proj_done")
    A("s_endpgm")
    return dict(name=NAME, vgpr=NV, sgpr=64, grid=256, block=320, lds=LDS_BYTES)
```

```python
import sys, importlib
from common import *
import os
attn = importlib.import_module(os.environ.get('ATTN', 'attn2'))

HEADER = open('gated_mix__mha_block__grouped_kv_mqa__prompt.s.ref').read().split('; Override launch')[0]

def build(parts, out):
    A = Asm()
    infos = []
    for p in parts:
        infos.append(p(A))
    s = HEADER
    for i in infos:
        s += f"; @launch kernel={i['name']} grid=({i['grid']},1,1) block=({i['block']},1,1) lds={i['lds']}\n"
    s += '.amdgcn_target "amdgcn-amd-amdhsa--gfx950"\n.text\n'
    s += A.text()
    s += '.section .rodata,"a"\n'
    for i in infos:
        acc = i.get('accum', (i['vgpr'] + 3) // 4 * 4)
        s += kernel_desc(i['name'], i['vgpr'], i['sgpr'], acc)
    open(out, 'w').write(s)

if __name__ == "__main__":
    which = sys.argv[1] if len(sys.argv) > 1 else "all"
    out = sys.argv[2] if len(sys.argv) > 2 else "gated_mix__mha_block__grouped_kv_mqa__prompt.s"
    if which == "attn":
        build([attn.gen_attn], out)
    elif which == "pa":
        import proj
        build([proj.gen_proj, attn.gen_attn], out)
    else:
        proj = importlib.import_module(os.environ.get('PROJ', 'proj3')); oproj = importlib.import_module(os.environ.get('OPROJ', 'oproj2'))
        build([proj.gen_proj, attn.gen_attn, oproj.gen_oproj], out)
```

```python
S_TOK = 2048
D_MODEL = 640
NH = 32
DH = 20

KV_IMG = 163840
WS_KV = 0
WS_Q = 0x600000
WS_O = 0xC00000
WS_G = 0x1200000
WS_W = 0x1300000
WS_END = 0x1500000

PAIR = 5120
def k0_off(T): return (T >> 1) * PAIR + (T & 1) * 1024
def k1_off(P): return P * PAIR + 2048
def v_off(T): return (T >> 1) * PAIR + 2560 + (T & 1) * 1280

ORT, OKS = 1024, 128 * 1024
WCT, WKS = 1024, 40 * 1024

class Asm:
    def __init__(self):
        self.lines = []
    def __call__(self, s, *a):
        for l in s.split("\n"):
            l = l.strip()
            if l:
                self.lines.append("    " + l)
    def label(self, n):
        self.lines.append(n + ":")
    def raw(self, s):
        self.lines.append(s)
    def c(self, s):
        self.lines.append("    ; " + s)
    def text(self):
        return "\n".join(self.lines) + "\n"

def vr(a, n=1):
    return f"v{a}" if n == 1 else f"v[{a}:{a+n-1}]"
def ar(a, n=1):
    return f"a{a}" if n == 1 else f"a[{a}:{a+n-1}]"
def sr(a, n=1):
    return f"s{a}" if n == 1 else f"s[{a}:{a+n-1}]"

def kernel_head(A, name):
    A.raw(f".globl {name}")
    A.raw(".p2align 8")
    A.raw(f".type {name},@function")
    A.label(name)

def kernel_desc(name, vgpr, sgpr, accum):
    return f""".p2align 6
.amdhsa_kernel {name}
  .amdhsa_next_free_vgpr {vgpr}
  .amdhsa_next_free_sgpr {sgpr}
  .amdhsa_accum_offset {accum}
  .amdhsa_group_segment_fixed_size 0
  .amdhsa_kernarg_size 96
  .amdhsa_user_sgpr_count 2
  .amdhsa_user_sgpr_kernarg_segment_ptr 1
  .amdhsa_system_sgpr_workgroup_id_x 1
.end_amdhsa_kernel
"""

import os
RT = os.environ.get('RT')
RT_BASE = 0x1210000
RS = 60
def rt_start(A, s0=RS):
    if RT:
        A(f"s_memrealtime s[{RS}:{RS+1}]")
        A(f"s_memtime s[{RS+4}:{RS+5}]")
        for i in range(16):
            A(f"s_mov_b32 s{RS+8+i}, 0")
        A("s_waitcnt lgkmcnt(0)")
def mark(A, i):
    if RT:
        A(f"s_memtime s[{RS+8+2*i}:{RS+9+2*i}]")
        A("s_waitcnt lgkmcnt(0)")
def rt_end(A, s0, kidx, srd, sW, sT, v0):
    if RT:
        A("s_waitcnt vmcnt(0)")
        A(f"s_memrealtime s[{RS+2}:{RS+3}]")
        A(f"s_memtime s[{RS+6}:{RS+7}]")
        A("s_waitcnt lgkmcnt(0)")
        A(f"s_getreg_b32 s{RS+22}, hwreg(HW_REG_HW_ID)")
        A(f"s_getreg_b32 s{RS+23}, hwreg(HW_REG_XCC_ID)")
        A("s_mov_b64 exec, 1")
        A(f"s_lshl_b32 s{sT}, s2, 3")
        A(f"s_add_u32 s{sT}, s{sT}, s{sW}")
        A(f"s_mul_i32 s{sT}, s{sT}, 96")
        A(f"s_add_u32 s{sT}, s{sT}, {RT_BASE} + {kidx}*196608")
        A(f"v_mov_b32 v{v0+4}, 0")
        for q in range(6):
            for i in range(4):
                A(f"v_mov_b32 v{v0+i}, s{RS+4*q+i}")
            A(f"buffer_store_dwordx4 v[{v0}:{v0+3}], v{v0+4}, {srd}, s{sT} offen offset:{16*q}")
            A("s_nop 1")
```

```python
from common import *
import os
NAME = "proj_kernel"
STAMP = os.environ.get('STAMP')

XS = 16384
WB = 65536
WSZ = 20480
EB = WB + 4 * WSZ
ESZ = 2560
LDS_BYTES = EB + 4 * ESZ + 256
QPAIR = 2560
QHEAD = 32 * QPAIR
QSCALE = 0x3ea5296d

import struct, math
QSCALE = struct.unpack('<I', struct.pack('<f', (20 ** -0.5) * math.log2(math.e)))[0]

def gen_proj(A):
    sX, sWq, sWb, sWk, sWv, sGt, sWS = 4, 6, 8, 10, 12, 14, 16
    SX, SW, SO = 20, 24, 28
    SG = 32
    sW, sMT, sNT, sT, sU, sIT, sPITCH = 36, 37, 38, 39, 40, 41, 42
    sXO, sWO, sMX, sMW = 43, 44, 45, 46
    sRX, sRW = 47, 48
    sNX, sNW = 49, 50
    sST = 51
    sB0, sB1, sHS, sSC, sTT = 52, 53, 54, 55, 56
    srd = lambda b: f"s[{b}:{b+3}]"
    ACC = 0
    XF = [80, 84]
    WF = 88
    AX0, AX, AW0, AW = 108, 112, 116, 117
    VOX, VOW = 118, 122
    LN, T0, T1, T2, T3 = 127, 128, 129, 130, 131
    VS = 132
    NV = 140

    def csel(d, a, b):
        A(f"s_mov_b32 s{d}, {a}")
        A(f"s_cselect_b32 s{d}, s{d}, {b}")
    kernel_head(A, NAME)
    A("s_cmp_ge_u32 s2, 256")
    A("s_cbranch_scc1 L_proj_done")
    rt_start(A, 60)
    A(f"s_load_dwordx4 s[{sX}:{sX+3}], s[0:1], 0")
    A(f"s_load_dwordx2 s[{sWb}:{sWb+1}], s[0:1], 32")
    A(f"s_load_dwordx4 s[{sWv}:{sWv+3}], s[0:1], 48")
    A(f"s_load_dwordx2 s[{sWk}:{sWk+1}], s[0:1], 40")
    A(f"s_load_dwordx2 s[{sWS}:{sWS+1}], s[0:1], 88")
    A(f"s_load_dwordx2 s[18:19], s[0:1], 64")
    A(f"v_lshrrev_b32 v{T0}, 6, v0")
    A(f"v_and_b32 v{LN}, 63, v0")
    A(f"v_readfirstlane_b32 s{sW}, v{T0}")
    A(f"s_and_b32 s{sT}, s2, 1")
    A(f"s_lshl_b32 s{sMT}, s{sT}, 3")
    A(f"s_lshr_b32 s{sT}, s2, 3")
    A(f"s_and_b32 s{sT}, s{sT}, 7")
    A(f"s_add_u32 s{sMT}, s{sMT}, s{sT}")
    A(f"s_lshr_b32 s{sT}, s2, 1")
    A(f"s_and_b32 s{sT}, s{sT}, 3")
    A(f"s_lshl_b32 s{sNT}, s{sT}, 2")
    A(f"s_lshr_b32 s{sT}, s2, 6")
    A(f"s_add_u32 s{sNT}, s{sNT}, s{sT}")
    for b in (SX, SW, SO, SG):
        A(f"s_mov_b32 s{b+3}, 0x00020000")
    A(f"s_mov_b32 s{sNX}, {2048*1280}")
    A(f"s_mov_b32 s{SX+2}, {2048*1280}")
    A(f"s_mov_b32 s{SO+2}, {WS_END}")
    A(f"s_mov_b32 s{SG+2}, 1280")
    A(f"s_waitcnt lgkmcnt(0)")
    mark(A, 0)
    A(f"s_mov_b32 s{SX}, s{sX}")
    A(f"s_and_b32 s{SX+1}, s{sX+1}, 0xffff")
    A(f"s_mov_b32 s{SO}, s{sWS}")
    A(f"s_and_b32 s{SO+1}, s{sWS+1}, 0xffff")
    A(f"s_mov_b32 s{SG}, s18")
    A(f"s_and_b32 s{SG+1}, s19, 0xffff")
    A(f"s_cmp_eq_u32 s{sW}, 4")
    A(f"s_cbranch_scc1 L_proj_extra")
    PF = int(os.environ.get('PF', '128'))

    A(f"s_cmp_lt_u32 s{sNT}, 12")
    A(f"s_cselect_b32 s{SW}, s{sWq}, s{sWb}")
    A(f"s_cselect_b32 s{sU}, s{sWq+1}, s{sWb+1}")
    csel(sPITCH, 3840, 1280)
    csel(sNW, 640*3840, 640*1280)
    A(f"s_cselect_b32 s{sT}, 0, 12")
    A(f"s_and_b32 s{SW+1}, s{sU}, 0xffff")
    A(f"s_mov_b32 s{SW+2}, s{sNW}")
    A(f"s_sub_u32 s{sT}, s{sNT}, s{sT}")
    A(f"s_mul_i32 s{sWO}, s{sT}, 320")
    if PF:
        A(f"s_cmp_eq_u32 s{sW}, 5")
        A(f"s_cbranch_scc0 L_proj_main")
        lpr = 1280 // PF
        A(f"s_lshl_b32 s{sT}, s{sMT}, 2")
        A(f"s_and_b32 s{sU}, s{sNT}, 3")
        A(f"s_add_u32 s{sT}, s{sT}, s{sU}")
        A(f"s_mul_i32 s{sT}, s{sT}, 40960")
        A(f"v_mul_u32_u24 v{T0}, {PF}, v{LN}")
        A(f"s_lshr_b32 s{sU}, s2, 3")
        A(f"s_mul_i32 s{sU}, s{sU}, 20")
        A(f"s_mul_i32 s{sU}, s{sU}, s{sPITCH}")
        A(f"s_and_b32 s{sST}, s{sNT}, 3")
        A(f"s_mul_i32 s{sST}, s{sST}, 320")
        A(f"s_sub_u32 s{sST}, s{sWO}, s{sST}")
        A(f"s_add_u32 s{sU}, s{sU}, s{sST}")
        nW = 20 * lpr
        magic = {10: 6554, 20: 3277}[lpr]
        for i in range((nW + 63) // 64):
            A(f"v_add_u32 v{T1}, {64*i}, v{LN}")
            A(f"v_min_u32 v{T1}, {nW-1}, v{T1}")
            A(f"v_mul_u32_u24 v{T2}, {magic}, v{T1}")
            A(f"v_lshrrev_b32 v{T2}, 16, v{T2}")
            A(f"v_mul_u32_u24 v{T3}, {lpr}, v{T2}")
            A(f"v_sub_u32 v{T3}, v{T1}, v{T3}")
            A(f"v_mul_u32_u24 v{T2}, s{sPITCH}, v{T2}")
            A(f"v_mul_u32_u24 v{T3}, {PF}, v{T3}")
            A(f"v_add_u32 v{T2}, v{T2}, v{T3}")
            A(f"buffer_load_dword v{i}, v{T2}, {srd(SW)}, s{sU} offen")
        for i in range(40960 // (64 * PF)):
            A(f"buffer_load_dword v{16+i}, v{T0}, {srd(SX)}, s{sT} offen")
            A(f"s_add_u32 s{sT}, s{sT}, {64*PF}")
        A("s_endpgm")
        A.label("L_proj_main")
    A(f"v_lshrrev_b32 v{T0}, 3, v{LN}")
    A(f"v_lshrrev_b32 v{T1}, 4, v{LN}")
    A(f"v_and_b32 v{T2}, 7, v{LN}")
    A(f"v_xor_b32 v{T2}, v{T2}, v{T1}")
    A(f"v_lshlrev_b32 v{T2}, 4, v{T2}")
    A(f"s_lshl_b32 s{sT}, s{sMT}, 7")
    A(f"s_lshl_b32 s{sU}, s{sW}, 5")
    A(f"s_add_u32 s{sT}, s{sT}, s{sU}")
    A(f"v_add_u32 v{T0}, s{sT}, v{T0}")
    A(f"v_mul_u32_u24 v{T0}, 1280, v{T0}")
    A(f"v_add_u32 v{VOX}, v{T0}, v{T2}")
    A(f"v_xor_b32 v{T2}, 64, v{T2}")
    A(f"v_add_u32 v{VOX+1}, v{T0}, v{T2}")
    A(f"v_add_u32 v{VOX+1}, {8*1280}, v{VOX+1}")
    A(f"v_add_u32 v{VOX+2}, {16*1280}, v{VOX}")
    A(f"v_add_u32 v{VOX+3}, {16*1280}, v{VOX+1}")
    A(f"s_mul_i32 s{sT}, s{sW}, 320")
    for jj in range(5):
        A(f"v_add_u32 v{T0}, s{sT}, v{LN}")
        if jj: A(f"v_add_u32 v{T0}, {64*jj}, v{T0}")
        A(f"v_mul_u32_u24 v{T1}, 3277, v{T0}")
        A(f"v_lshrrev_b32 v{T1}, 16, v{T1}")
        A(f"v_mul_u32_u24 v{T2}, 20, v{T1}")
        A(f"v_sub_u32 v{T2}, v{T0}, v{T2}")
        A(f"v_mul_u32_u24 v{T1}, s{sPITCH}, v{T1}")
        A(f"v_lshl_add_u32 v{VOW+jj}, v{T2}, 4, v{T1}")
    A(f"s_mov_b32 s{sXO}, 0")
    A(f"s_lshl_b32 s{sMX}, s{sW}, 12")
    A(f"s_mul_i32 s{sMW}, s{sW}, 5120")
    A(f"s_add_u32 s{sMW}, s{sMW}, {WB}")
    A(f"s_mov_b32 s{sST}, 0")
    A(f"s_lshl_b32 s{sPITCH}, s{sPITCH}, 6")

    def dma(n):
        if n < 4:
            A(f"s_add_u32 m0, s{sMX}, {1024*n}")
            A("s_nop 0")
            A(f"buffer_load_dwordx4 v{VOX+n}, {srd(SX)}, s{sXO} offen lds")
        else:
            A(f"s_add_u32 m0, s{sMW}, {1024*(n-4)}")
            A("s_nop 0")
            A(f"buffer_load_dwordx4 v{VOW+n-4}, {srd(SW)}, s{sWO} offen lds")
    def next_stage():
        A(f"s_add_u32 s{sST}, s{sST}, 1")
        A(f"s_add_u32 s{sXO}, s{sXO}, 128")
        A(f"s_add_u32 s{sWO}, s{sWO}, s{sPITCH}")
        A(f"s_add_u32 s{sMX}, s{sMX}, {XS}")
        A(f"s_and_b32 s{sMX}, s{sMX}, 0xffff")
        A(f"s_add_u32 s{sMW}, s{sMW}, {WSZ}")
        A(f"s_sub_u32 s{sT}, s{sMW}, {4*WSZ}")
        A(f"s_cmp_ge_u32 s{sMW}, {WB+4*WSZ}")
        A(f"s_cselect_b32 s{sMW}, s{sT}, s{sMW}")
        A(f"s_cmp_lt_u32 s{sST}, 10")
        A(f"s_cselect_b32 s{SX+2}, s{sNX}, 0")
        A(f"s_cselect_b32 s{SW+2}, s{sNW}, 0")
    for st in range(2):
        for n in range(9): dma(n)
        next_stage()
    for n in range(3): dma(n)

    A(f"v_and_b32 v{T0}, 31, v{LN}")
    A(f"v_lshrrev_b32 v{T1}, 5, v{LN}")
    A(f"v_lshrrev_b32 v{T2}, 1, v{T0}")
    A(f"v_and_b32 v{T2}, 7, v{T2}")
    A(f"v_xor_b32 v{T2}, v{T2}, v{T1}")
    A(f"v_lshlrev_b32 v{T2}, 4, v{T2}")
    A(f"s_lshl_b32 s{sT}, s{sW}, 12")
    A(f"v_lshl_add_u32 v{T2}, v{T0}, 7, v{T2}")
    A(f"v_add_u32 v{AX0}, s{sT}, v{T2}")
    for k in range(1, 4):
        A(f"v_xor_b32 v{AX0+k}, {32*k}, v{AX0}")
    A(f"v_bfe_u32 v{T2}, v{LN}, 2, 2")
    A(f"v_lshl_add_u32 v{T2}, v{T1}, 3, v{T2}")
    A(f"v_mul_u32_u24 v{T2}, 320, v{T2}")
    A(f"v_bfe_u32 v{T3}, v{LN}, 4, 1")
    A(f"v_lshl_add_u32 v{T2}, v{T3}, 5, v{T2}")
    A(f"v_and_b32 v{T3}, 3, v{LN}")
    A(f"v_lshl_add_u32 v{T2}, v{T3}, 3, v{T2}")
    A(f"v_add_u32 v{AW0}, {WB}, v{T2}")
    for k in range(4):
        A(f"v_mov_b32 v{AX+k}, v{AX0+k}")
    A(f"v_mov_b32 v{AW}, v{AW0}")
    A(f"s_mov_b32 s{sRX}, 0")
    A(f"s_mov_b32 s{sRW}, 0")
    for i in range(80):
        A(f"v_mov_b32 v{ACC+i}, 0")
    A(f"s_mov_b32 s{sIT}, 0")

    def rd_x(ks):
        A(f"ds_read_b128 {vr(XF[ks&1],4)}, v{AX+ks}")
    def rd_w(j, ks):
        for h2 in range(2):
            A(f"ds_read_b64_tr_b16 {vr(WF+4*j+2*h2,2)}, v{AW} offset:{ks*5120+h2*1280+j*64}")

    mark(A, 1)
    A("s_waitcnt vmcnt(12)")
    mark(A, 2)
    A("s_barrier")
    mark(A, 3)
    rd_x(0)
    for j in range(5): rd_w(j, 0)
    A(f"s_cmp_ge_u32 s{sNT}, 8")
    A(f"s_cbranch_scc0 L_proj_loop_qk")
    A(f"s_cmp_lt_u32 s{sNT}, 12")
    A(f"s_cbranch_scc1 L_proj_loop_v")

    def main_loop(kind):
        A.label(f"L_proj_loop_{kind}")
        for ks in range(4):
            nks = (ks + 1) & 3
            if ks == 3:
                A("s_waitcnt vmcnt(9)")
                A("s_barrier")
                next_stage()
                A(f"s_add_u32 s{sRX}, s{sRX}, {XS}")
                A(f"s_and_b32 s{sRX}, s{sRX}, 0xffff")
                A(f"s_add_u32 s{sRW}, s{sRW}, {WSZ}")
                A(f"s_cmp_ge_u32 s{sRW}, {4*WSZ}")
                A(f"s_cselect_b32 s{sRW}, 0, s{sRW}")
                for k in range(4):
                    A(f"v_add_u32 v{AX+k}, s{sRX}, v{AX0+k}")
                A(f"v_add_u32 v{AW}, s{sRW}, v{AW0}")
            rd_x(nks)
            for j in range(5):
                A("s_waitcnt lgkmcnt(9)")
                a, b = vr(WF+4*j, 4), vr(XF[ks&1], 4)
                if kind == 'v': a, b = b, a
                A(f"v_mfma_f32_32x32x16_bf16 {vr(ACC+16*j,16)}, {a}, {b}, {vr(ACC+16*j,16)}")
                rd_w(j, nks)
                base = {3: 0, 0: 3, 1: 6}.get(ks)
                if base is not None and j in (0, 2, 4):
                    dma(base + j // 2)
        A(f"s_add_u32 s{sIT}, s{sIT}, 1")
        A(f"s_cmp_lt_u32 s{sIT}, 10")
        A(f"s_cbranch_scc1 L_proj_loop_{kind}")
        mark(A, 4)

    main_loop('qk')
    A(f"s_and_b32 s{sTT}, s{sW}, 1")
    A(f"s_lshl_b32 s{sT}, s{sMT}, 1")
    A(f"s_lshr_b32 s{sU}, s{sW}, 1")
    A(f"s_add_u32 s{sT}, s{sT}, s{sU}")
    A(f"s_lshr_b32 s{sU}, s{sNT}, 2")
    A(f"s_cmp_eq_u32 s{sU}, 1")
    csel(sHS, KV_IMG, QHEAD)
    csel(sB1, PAIR, QPAIR)
    csel(sU, WS_KV, WS_Q)
    A(f"s_cselect_b32 s{sSC}, 1.0, {QSCALE:#x}")
    A(f"s_mul_i32 s{sB0}, s{sT}, s{sB1}")
    A(f"s_add_u32 s{sB0}, s{sB0}, s{sU}")
    A(f"s_and_b32 s{sT}, s{sNT}, 3")
    A(f"s_lshl_b32 s{sT}, s{sT}, 3")
    A(f"s_cmp_ge_u32 s{sNT}, 12")
    A(f"s_cselect_b32 s{sU}, 32, 0")
    A(f"s_add_u32 s{sT}, s{sT}, s{sU}")
    A(f"s_mul_i32 s{sT}, s{sT}, s{sHS}")
    A(f"s_add_u32 s{sB0}, s{sB0}, s{sT}")
    A(f"s_lshl_b32 s{sT}, s{sTT}, 3")
    A(f"s_add_u32 s{sB1}, s{sB0}, s{sT}")
    A(f"s_add_u32 s{sB1}, s{sB1}, 2048")
    A(f"s_lshl_b32 s{sT}, s{sTT}, 10")
    A(f"s_add_u32 s{sB0}, s{sB0}, s{sT}")
    A(f"v_and_b32 v{T0}, 31, v{LN}")
    A(f"v_lshlrev_b32 v{T0}, 4, v{T0}")
    A(f"v_lshrrev_b32 v{T1}, 5, v{LN}")
    A(f"v_lshl_add_u32 v{VS}, v{T1}, 3, v{T0}")
    A(f"v_mul_u32_u24 v{T2}, 504, v{T1}")
    A(f"v_add_u32 v{VS+1}, v{T2}, v{T0}")
    A(f"s_sub_u32 s{sT}, s{sB1}, s{sB0}")
    A(f"s_sub_u32 s{sU}, s{sT}, 520")
    A(f"v_mul_u32_u24 v{T2}, s{sU}, v{T1}")
    A(f"v_add_u32 v{VS+2}, v{T2}, v{T0}")
    A(f"s_sub_u32 s{sU}, s{sHS}, s{sT}")
    A(f"v_mul_u32_u24 v{T2}, s{sU}, v{T1}")
    A(f"v_add_u32 v{VS+3}, v{T2}, v{T0}")
    A("s_nop 7")
    for j in range(5):
        for g in range(4):
            r = ACC + 16 * j + 4 * g
            c0 = 8 * j + 2 * g
            hl, dg0 = c0 // 5, c0 % 5
            for i in range(4):
                A(f"v_mul_f32 v{r+i}, s{sSC}, v{r+i}")
            A(f"v_cvt_pk_bf16_f32 v{r}, v{r}, v{r+1}")
            A(f"v_cvt_pk_bf16_f32 v{r+1}, v{r+2}, v{r+3}")
            A(f"s_mul_i32 s{sT}, s{sHS}, {hl}")
            A(f"s_add_u32 s{sT}, s{sT}, s{sB1 if dg0 == 4 else sB0}")
            vs = VS + {0: 0, 2: 0, 1: 1, 3: 2, 4: 3}[dg0]
            imm = {0: 0, 1: 8, 2: 512, 3: 520, 4: 0}[dg0]
            A(f"buffer_store_dwordx2 {vr(r,2)}, v{vs}, {srd(SO)}, s{sT} offen offset:{imm}")
    rt_end(A, 60, 0, srd(SO), sW, sT, 100)
    A("s_endpgm")

    main_loop('v')
    A(f"s_and_b32 s{sTT}, s{sW}, 1")
    A(f"s_lshl_b32 s{sT}, s{sMT}, 1")
    A(f"s_lshr_b32 s{sU}, s{sW}, 1")
    A(f"s_add_u32 s{sT}, s{sT}, s{sU}")
    A(f"s_mul_i32 s{sB0}, s{sT}, {PAIR}")
    A(f"s_mul_i32 s{sT}, s{sTT}, 1280")
    A(f"s_add_u32 s{sB0}, s{sB0}, s{sT}")
    A(f"s_and_b32 s{sT}, s{sNT}, 3")
    A(f"s_mul_i32 s{sT}, s{sT}, {8*KV_IMG}")
    A(f"s_add_u32 s{sB0}, s{sB0}, s{sT}")
    A(f"s_add_u32 s{sB0}, s{sB0}, {WS_KV + 2560}")
    A(f"v_lshrrev_b32 v{T1}, 5, v{LN}")
    A(f"v_mul_u32_u24 v{T3}, 320, v{T1}")
    A(f"s_mov_b32 s{sT}, {KV_IMG}")
    for j in range(5):
        A(f"v_and_b32 v{T0}, 31, v{LN}")
        if j: A(f"v_add_u32 v{T0}, {32*j}, v{T0}")
        A(f"v_mul_u32_u24 v{T1}, 3277, v{T0}")
        A(f"v_lshrrev_b32 v{T1}, 16, v{T1}")
        A(f"v_mul_u32_u24 v{T2}, 20, v{T1}")
        A(f"v_sub_u32 v{T2}, v{T0}, v{T2}")
        A(f"v_mul_u32_u24 v{T1}, s{sT}, v{T1}")
        A(f"v_lshl_add_u32 v{T1}, v{T2}, 4, v{T1}")
        A(f"v_add_u32 v{VS+j}, v{T1}, v{T3}")
    for j in range(5):
        for t in range(2):
            r = ACC + 16 * j + 8 * t
            for i in range(4):
                A(f"v_cvt_pk_bf16_f32 v{r+i}, v{r+2*i}, v{r+2*i+1}")
            A(f"buffer_store_dwordx4 {vr(r,4)}, v{VS+j}, {srd(SO)}, s{sB0} offen offset:{640*t}")
    rt_end(A, 60, 0, srd(SO), sW, sT, 100)
    A("s_endpgm")

    A.label("L_proj_extra")
    EA = 0
    GF = 16
    EX = 96
    EW = 104
    EAX, EAW, EVO = 120, 122, 123
    EAX0, EAW0 = 124, 126
    A(f"s_and_b32 s{sTT}, s{sNT}, 1")
    A(f"s_cmp_eq_u32 s{sTT}, 0")
    A(f"s_cselect_b32 s{SW}, s{sWk}, s{sWv}")
    A(f"s_cselect_b32 s{sT}, s{sWk+1}, s{sWv+1}")
    A(f"s_and_b32 s{SW+1}, s{sT}, 0xffff")
    A(f"s_mov_b32 s{sNW}, {640*40}")
    A(f"s_mov_b32 s{SW+2}, {640*40}")
    A(f"v_lshlrev_b32 v{EVO}, 4, v{LN}")
    A(f"v_lshrrev_b32 v{T0}, 4, v{LN}")
    A(f"v_lshlrev_b32 v{T0}, 4, v{T0}")
    for s in range(20):
        A(f"buffer_load_dwordx4 {vr(GF+4*s,4)}, v{T0}, {srd(SG)}, 0 offen offset:{64*s}")
    A(f"s_mov_b32 s{sWO}, 0")
    A(f"s_mov_b32 s{sMW}, {EB}")
    A(f"s_mov_b32 s{sST}, 0")
    def edma():
        A(f"s_mov_b32 m0, s{sMW}")
        A("s_nop 0")
        A(f"buffer_load_dwordx4 v{EVO}, {srd(SW)}, s{sWO} offen lds")
        A(f"buffer_load_dwordx4 v{EVO}, {srd(SW)}, s{sWO} offen offset:1024 lds")
        A(f"s_mov_b32 exec_hi, 0")
        A(f"buffer_load_dwordx4 v{EVO}, {srd(SW)}, s{sWO} offen offset:2048 lds")
        A(f"s_mov_b64 exec, -1")
        A(f"s_add_u32 s{sST}, s{sST}, 1")
        A(f"s_add_u32 s{sWO}, s{sWO}, {ESZ}")
        A(f"s_add_u32 s{sMW}, s{sMW}, {ESZ}")
        A(f"s_cmp_ge_u32 s{sMW}, {EB+4*ESZ}")
        A(f"s_cselect_b32 s{sMW}, {EB}, s{sMW}")
    for st in range(3): edma()
    A(f"s_lshr_b32 s{sT}, s{sNT}, 1")
    A(f"s_lshl_b32 s{sT}, s{sT}, 4")
    A(f"v_and_b32 v{T0}, 15, v{LN}")
    A(f"v_add_u32 v{T0}, s{sT}, v{T0}")
    A(f"v_bfe_u32 v{T1}, v{T0}, 1, 3")
    A(f"v_lshrrev_b32 v{T2}, 4, v{LN}")
    A(f"v_xor_b32 v{T1}, v{T1}, v{T2}")
    A(f"v_lshlrev_b32 v{T1}, 4, v{T1}")
    A(f"v_lshl_add_u32 v{EAX0}, v{T0}, 7, v{T1}")
    A(f"v_xor_b32 v{EAX0+1}, 64, v{EAX0}")
    A(f"v_bfe_u32 v{T1}, v{LN}, 2, 2")
    A(f"v_lshl_add_u32 v{T1}, v{T2}, 3, v{T1}")
    A(f"v_mul_u32_u24 v{T1}, 40, v{T1}")
    A(f"v_and_b32 v{T3}, 3, v{LN}")
    A(f"v_lshl_add_u32 v{T1}, v{T3}, 3, v{T1}")
    A(f"v_add_u32 v{EAW0}, {EB}, v{T1}")
    for i in range(12):
        A(f"v_mov_b32 v{EA+i}, 0")
    A(f"s_mov_b32 s{sRX}, 0")
    A(f"s_mov_b32 s{sRW}, 0")
    A("s_waitcnt vmcnt(6)")
    A("s_barrier")
    A(f"s_cmp_eq_u32 s{sTT}, 0")
    A(f"s_cbranch_scc0 L_proj_ex_v")
    for kind in ('k', 'v'):
        if kind == 'v': A.label("L_proj_ex_v")
        for st in range(10):
            A(f"v_add_u32 v{EAX}, s{sRX}, v{EAX0}")
            A(f"v_add_u32 v{EAX+1}, s{sRX}, v{EAX0+1}")
            A(f"v_add_u32 v{EAW}, s{sRW}, v{EAW0}")
            for u in range(2):
                A(f"ds_read_b128 {vr(EX+4*u,4)}, v{EAX+u}")
                for ct in range(2):
                    for h2 in range(2):
                        A(f"ds_read_b64_tr_b16 {vr(EW+8*u+4*ct+2*h2,2)}, v{EAW} offset:{u*1280+h2*160+ct*32}")
            A("s_waitcnt lgkmcnt(0)")
            for u in range(2):
                for ct in range(2):
                    a, b = vr(EW+8*u+4*ct, 4), vr(EX+4*u, 4)
                    if kind == 'v': a, b = b, a
                    A(f"v_mfma_f32_16x16x32_bf16 {vr(EA+4*ct,4)}, {a}, {b}, {vr(EA+4*ct,4)}")
                if kind == 'k':
                    A(f"v_mfma_f32_16x16x32_bf16 {vr(EA+8,4)}, {vr(GF+4*(2*st+u),4)}, {vr(EX+4*u,4)}, {vr(EA+8,4)}")
            A(f"s_waitcnt vmcnt({3 if st + 2 <= 9 else 0})")
            A("s_barrier")
            if st + 3 <= 9: edma()
            A(f"s_add_u32 s{sRX}, s{sRX}, {XS}")
            A(f"s_and_b32 s{sRX}, s{sRX}, 0xffff")
            A(f"s_add_u32 s{sRW}, s{sRW}, {ESZ}")
            A(f"s_cmp_ge_u32 s{sRW}, {4*ESZ}")
            A(f"s_cselect_b32 s{sRW}, 0, s{sRW}")
        A(f"s_lshl_b32 s{sT}, s{sMT}, 1")
        A(f"s_lshr_b32 s{sU}, s{sNT}, 3")
        A(f"s_add_u32 s{sT}, s{sT}, s{sU}")
        A(f"s_mul_i32 s{sB0}, s{sT}, {PAIR}")
        A(f"s_add_u32 s{sB0}, s{sB0}, {WS_KV + 32*KV_IMG}")
        A(f"s_bfe_u32 s{sTT}, s{sNT}, 0x10002")
        A(f"s_bfe_u32 s{sU}, s{sNT}, 0x10001")
        A(f"v_and_b32 v{T0}, 15, v{LN}")
        A(f"v_lshrrev_b32 v{T1}, 4, v{LN}")
        A(f"v_cvt_pk_bf16_f32 v{EA}, v{EA}, v{EA+1}")
        A(f"v_cvt_pk_bf16_f32 v{EA+1}, v{EA+2}, v{EA+3}")
        A(f"v_cvt_pk_bf16_f32 v{EA+4}, v{EA+4}, v{EA+5}")
        A(f"v_cvt_pk_bf16_f32 v{EA+5}, v{EA+6}, v{EA+7}")
        if kind == 'k':
            A(f"s_lshl_b32 s{sU}, s{sU}, 8")
            A(f"s_add_u32 s{sB0}, s{sB0}, s{sU}")
            A(f"v_lshlrev_b32 v{T0}, 4, v{T0}")
            A(f"v_lshrrev_b32 v{T2}, 1, v{T1}")
            A(f"v_lshl_add_u32 v{T2}, v{T2}, 9, v{T0}")
            A(f"v_and_b32 v{T3}, 1, v{T1}")
            A(f"v_lshl_add_u32 v{T2}, v{T3}, 3, v{T2}")
            A(f"s_lshl_b32 s{sT}, s{sTT}, 10")
            A(f"s_add_u32 s{sT}, s{sT}, s{sB0}")
            A(f"buffer_store_dwordx2 {vr(EA,2)}, v{T2}, {srd(SO)}, s{sT} offen")
            A(f"s_lshl_b32 s{sT}, s{sTT}, 3")
            A(f"s_add_u32 s{sT}, s{sT}, s{sB0}")
            A(f"v_mul_f32 v{EA+8}, 0xbfb8aa3b, v{EA+8}")
            A(f"v_exp_f32 v{EA+8}, v{EA+8}")
            A("s_nop 0")
            A(f"v_add_f32 v{EA+8}, 1.0, v{EA+8}")
            A(f"v_rcp_f32 v{EA+8}, v{EA+8}")
            A(f"s_mov_b32 exec_lo, 0xffff")
            A(f"s_mov_b32 exec_hi, 0")
            A(f"buffer_store_dwordx2 {vr(EA+4,2)}, v{T0}, {srd(SO)}, s{sT} offen offset:2048")
            A(f"s_lshl_b32 s{sT}, s{sMT}, 9")
            A(f"s_lshr_b32 s{sU}, s{sNT}, 1")
            A(f"s_lshl_b32 s{sU}, s{sU}, 6")
            A(f"s_add_u32 s{sT}, s{sT}, s{sU}")
            A(f"s_add_u32 s{sT}, s{sT}, {WS_G}")
            A(f"v_lshrrev_b32 v{T0}, 2, v{T0}")
            A(f"buffer_store_dword v{EA+8}, v{T0}, {srd(SO)}, s{sT} offen")
            rt_end(A, 60, 0, srd(SO), sW, sT, 100)
            A("s_endpgm")
        else:
            A(f"s_mul_i32 s{sU}, s{sU}, 640")
            A(f"s_add_u32 s{sB0}, s{sB0}, s{sU}")
            A(f"s_mul_i32 s{sT}, s{sTT}, 1280")
            A(f"s_add_u32 s{sB0}, s{sB0}, s{sT}")
            A(f"v_and_b32 v{T2}, 1, v{T1}")
            A(f"v_mul_u32_u24 v{T2}, 320, v{T2}")
            A(f"v_lshl_add_u32 v{T2}, v{T0}, 4, v{T2}")
            A(f"v_lshrrev_b32 v{T3}, 1, v{T1}")
            A(f"v_lshl_add_u32 v{T2}, v{T3}, 3, v{T2}")
            A(f"buffer_store_dwordx2 {vr(EA,2)}, v{T2}, {srd(SO)}, s{sB0} offen offset:2560")
            A(f"v_cmp_gt_u32 vcc, 4, v{T0}")
            A(f"s_and_b64 exec, exec, vcc")
            A(f"buffer_store_dwordx2 {vr(EA+4,2)}, v{T2}, {srd(SO)}, s{sB0} offen offset:{2560+256}")
    rt_end(A, 60, 0, srd(SO), sW, sT, 100)
    A.label("L_proj_done")
    A("s_endpgm")
    return dict(name=NAME, vgpr=NV, sgpr=88, grid=256, block=(384 if PF else 320), lds=LDS_BYTES)
```

```python
import sys, importlib
from common import *
import os
attn = importlib.import_module(os.environ.get('ATTN', 'attn2'))

HEADER = open('gated_mix__mha_block__grouped_kv_mqa__prompt.s.ref').read().split('; Override launch')[0]

def build(parts, out):
    A = Asm()
    infos = []
    for p in parts:
        infos.append(p(A))
    s = HEADER
    for i in infos:
        s += f"; @launch kernel={i['name']} grid=({i['grid']},1,1) block=({i['block']},1,1) lds={i['lds']}\n"
    s += '.amdgcn_target "amdgcn-amd-amdhsa--gfx950"\n.text\n'
    s += A.text()
    s += '.section .rodata,"a"\n'
    for i in infos:
        acc = i.get('accum', (i['vgpr'] + 3) // 4 * 4)
        s += kernel_desc(i['name'], i['vgpr'], i['sgpr'], acc)
    open(out, 'w').write(s)

if __name__ == "__main__":
    which = sys.argv[1] if len(sys.argv) > 1 else "all"
    out = sys.argv[2] if len(sys.argv) > 2 else "gated_mix__mha_block__grouped_kv_mqa__prompt.s"
    if which == "attn":
        build([attn.gen_attn], out)
    elif which == "pa":
        import proj
        build([proj.gen_proj, attn.gen_attn], out)
    else:
        proj = importlib.import_module(os.environ.get('PROJ', 'proj3')); oproj = importlib.import_module(os.environ.get('OPROJ', 'oproj2'))
        def nop(A):
            kernel_head(A, "nop_kernel"); A("s_endpgm")
            return dict(name="nop_kernel", vgpr=8, sgpr=16, grid=256, block=64, lds=0)
        parts = [proj.gen_proj, attn.gen_attn, oproj.gen_oproj]
        if os.environ.get('NOPK') == 'end': parts = parts + [nop]
        if os.environ.get('NOPK') == 'start': parts = [nop] + parts
        build(parts, out)
```
